```python
import torch

def _softmax(x, axis=-1):
    return torch.softmax(x, dim=axis)
def _gelu(x):
    return torch.nn.functional.gelu(x, approximate="tanh")
def _silu(x):
    return torch.nn.functional.silu(x)
def _sigmoid(x):
    return torch.sigmoid(x)
def _layernorm(x, axis=-1, eps=1e-5):
    m = x.mean(dim=axis, keepdim=True)
    v = x.var(dim=axis, keepdim=True, unbiased=False)
    return (x - m) / torch.sqrt(v + eps)
def _scatter_add(tgt, idx, src, axis=0):
    return tgt.clone().index_add_(axis, idx, src)
def _segment_sum(src, seg, n):
    out = torch.zeros((n,) + src.shape[1:], dtype=src.dtype)
    return out.index_add_(0, seg, src)
def _pad(x, pw):
    flat = tuple(v for pair in reversed(pw) for v in pair)
    return torch.nn.functional.pad(x, flat)

kernel_name = 'standalone__gqa_softmax__near_ridge'

def setup_inputs():

    _w = (lambda a: (lambda t: t.to(torch.bfloat16) if t.is_floating_point() else t)(torch.as_tensor(a)))
    B, Hq, Hkv, Sq, Sk, D = 8, 16, 8, 512, 512, 256
    return {
        "q": _w((lambda *s: torch.randn(*s, dtype=torch.bfloat16) * 0.8)(B, Hq, Sq, D)),
        "k": _w((lambda *s: torch.randn(*s, dtype=torch.bfloat16) * 0.8)(B, Hkv, Sk, D)),
        "v": _w((lambda *s: torch.randn(*s, dtype=torch.bfloat16) * 0.05)(B, Hkv, Sk, D)),
    }

def reference(q, k, v):
    B, Hq, Sq, D = q.shape
    Hkv = k.shape[1]
    rep = Hq // Hkv
    k = (lambda x, n, axis: torch.repeat_interleave(x, n, dim=axis))(k, rep, axis=1)
    v = (lambda x, n, axis: torch.repeat_interleave(x, n, dim=axis))(v, rep, axis=1)
    scale = D ** -0.5
    scores = torch.einsum("bhqd,bhkd->bhqk", q, k) * scale
    p = _softmax(scores, axis=-1)
    return torch.einsum("bhqk,bhkd->bhqd", p, v)
```

```python
import re

def regs(spec):
    m = re.fullmatch(r'([vas])\[(\d+):(\d+)\]', spec)
    if m:
        return [f"{m.group(1)}{i}" for i in range(int(m.group(2)), int(m.group(3)) + 1)]
    return [spec]

def rng(f, lo, n):
    return f"{f}{lo}" if n == 1 else f"{f}[{lo}:{lo+n-1}]"

VALU_KINDS = ('valu', 'trans', 'perm')
COST = dict(valu=1, trans=2, perm=2, ds=1, dsw=3, dma=2, load=2, store=5, salu=0, sync=0, raw=0)

class Op:
    __slots__ = ('text', 'kind', 'rd', 'wr', 'deps', 'tgt', 'idx', 'pos', 'cost', 'c', 'vmwait', 'lgwait',
                 'preds', 'name', 'prio', 'pin')
    def __init__(s, text, kind, rd=(), wr=(), deps=(), tgt=0.0, c=None, cost=None, name='', pin=False):
        s.text = text; s.kind = kind
        s.rd = [r for x in rd for r in regs(x)]
        s.wr = [r for x in wr for r in regs(x)]
        s.c = regs(c) if c else []
        s.deps = list(deps); s.tgt = tgt; s.pos = None
        s.cost = COST.get(kind, 0) if cost is None else cost
        s.vmwait = []; s.lgwait = []
        s.name = name; s.pin = pin

def need_ws(p, c):
    w = 0
    pw = set(p.wr)
    if p.kind == 'mfma':
        if c.kind == 'mfma':
            ab = set(c.rd) - set(c.c)
            if pw & ab: w = max(w, 8)
            if pw & set(c.c) and list(p.wr) != list(c.c): w = max(w, 6)
        elif c.kind != 'salu' and c.kind != 'sync':
            if pw & (set(c.rd) | set(c.wr)): w = max(w, 8)
            if c.kind in VALU_KINDS and set(p.c) & set(c.wr): w = max(w, 3)
    elif p.kind in VALU_KINDS:
        if c.kind == 'mfma' and pw & set(c.rd): w = max(w, 2)
        if p.kind == 'trans' and c.kind != 'trans' and pw & set(c.rd): w = max(w, 1)
        if c.kind == 'perm' and pw & (set(c.rd) | set(c.wr)): w = max(w, 2)
        if 'readfirstlane' in c.text and pw & set(c.rd): w = max(w, 1)
        sg = {r for r in pw if r[0] == 's' or r == 'vcc'}
        if sg & set(c.rd):
            if c.kind in VALU_KINDS: w = max(w, 2)
            if c.kind in ('dma', 'load', 'store'): w = max(w, 5)
            if c.kind == 'salu': w = max(w, 1)
    elif p.kind == 'salu':
        if 'm0' in pw and c.kind == 'dma': w = max(w, 1)
    elif p.kind in ('store', 'dsw'):
        if set(p.rd) & set(c.wr) and c.kind != 'salu': w = max(w, 2)
    return w

class Prog:
    def __init__(s):
        s.ops = []
        s.nm = 0
    def add(s, op):
        op.idx = len(s.ops); s.ops.append(op)
        if op.kind == 'mfma': s.nm += 1
        return op

    def build_deps(s):
        lastw = {}; readers = {}
        for op in s.ops:
            pr = set(op.deps) | set(op.vmwait) | set(op.lgwait)
            for r in op.rd:
                if r in lastw: pr.add(lastw[r])
            for r in op.wr:
                if r in lastw: pr.add(lastw[r])
                pr.update(readers.get(r, ()))
            pr.discard(op)
            op.preds = pr
            for r in op.rd: readers.setdefault(r, []).append(op)
            for r in op.wr:
                lastw[r] = op; readers[r] = []
        last = {}
        for op in s.ops:
            k = {'ds': 'l', 'dsw': 'l', 'sync': 's'}.get(op.kind)
            if k:
                if k in last: op.preds.add(last[k])
                last[k] = op
        for a, b in zip(s.vm_order, s.vm_order[1:]): b.preds.add(a)

    def schedule(s, la=2.0, lg_extra=None, verbose=False):
        s.build_deps()
        out = []
        pend_lg = []
        pend_vm = []
        stats = dict(nops=0, forced=0, cycles=0, waits=0)
        mf = [o for o in s.ops if o.kind == 'mfma']
        un = [o for o in s.ops if o.kind != 'mfma']
        un.sort(key=lambda o: (o.tgt, o.idx))
        ws_at = []
        cum = [0]
        def emit(op):
            op.pos = len(out); out.append(op)
            ws_at.append(cum[0])
            m = re.match(r's_nop (\d+)', op.text)
            n = op.text.count('\n') + 1
            cum[0] += (int(m.group(1)) + 1) if m else n
            if op.kind in ('ds', 'dsw'): pend_lg.append(op)
            if op.kind in ('dma', 'load', 'store'): pend_vm.append(op)
        def short(op):
            miss = 0
            for p in out[-14:]:
                w = need_ws(p, op)
                if w:
                    have = cum[0] - ws_at[p.pos] - 1
                    miss = max(miss, w - have)
            return miss
        def wait_for(op, extra=0):
            touch = set(op.rd) | set(op.wr)
            lg = vm = None
            for k, p in enumerate(pend_lg):
                if (p.kind == 'ds' and touch & set(p.wr)) or p in op.lgwait: lg = k
            for k, p in enumerate(pend_vm):
                if (p.kind == 'load' and touch & set(p.wr)) or p in op.vmwait: vm = k
            if lg is None and vm is None: return None
            t = []
            if vm is not None:
                n = len(pend_vm) - 1 - vm
                assert n <= 63
                t.append(f"vmcnt({n})"); del pend_vm[:vm + 1]
            if lg is not None:
                lg = min(lg + extra, len(pend_lg) - 1)
                n = len(pend_lg) - 1 - lg
                if n > 15: lg += n - 15; n = 15
                t.append(f"lgkmcnt({n})"); del pend_lg[:lg + 1]
            stats['waits'] += 1
            return Op("s_waitcnt " + " ".join(t), 'salu')
        def ready(op):
            return all(p.pos is not None for p in op.preds)
        def place(op):
            used = 0
            w = wait_for(op)
            if w: emit(w); used += 1
            m = short(op)
            if m > 0:
                emit(Op(f"s_nop {m-1}", 'salu')); stats['nops'] += m; used += m
            emit(op)
            if op.kind == 'raw' and 'lgkmcnt(0)' in op.text: del pend_lg[:]
            if op.kind == 'raw' and 'vmcnt(0)' in op.text: del pend_vm[:]
            if op in un: un.remove(op)
            return used + op.cost
        def force(op):
            used = 0
            for p in sorted((p for p in op.preds if p.pos is None), key=lambda o: o.idx):
                if p.pos is None:
                    assert p.kind != 'mfma', f"cycle: {op.text} needs later mfma {p.text}"
                    used += force(p); used += max(place(p), 1); stats['forced'] += 1
                    if verbose: print("forced", p.text.split('\n')[0], "tgt", p.tgt, "for", op.text)
            return used
        ORD = dict(ds=0, dsw=0, dma=0, load=0, store=0)
        def fill(i, nxt):
            used = 0; scal = 0
            last = i >= len(mf) - 1
            if nxt is not None and ready(nxt):
                w = wait_for(nxt, lg_extra(i) if lg_extra else 0)
                if w: emit(w); scal += 1
            progress = not (i < 0 or last)
            while progress:
                progress = False
                for o in un[:60]:
                    if o.tgt > i and not last: break
                    if o.kind in ('salu', 'sync', 'raw') and ready(o) and short(o) <= 0:
                        if scal == 0 or o.kind != 'salu' or o.tgt <= i - 3:
                            n0 = len(out); place(o); scal += sum(x.text.count('\n') + 1 for x in out[n0:]); progress = True
                            break
            used += max(0, scal - 1)
            if i < 0 or last:
                while True:
                    c = [o for o in un if (o.tgt <= i or last) and ready(o)]
                    if not c: break
                    c2 = c if i < 0 else ([o for o in c if short(o) <= 0] or c)
                    used += max(place(c2[0]), 1)
                return used
            seen_valu = False
            while True:
                cand = [o for o in un[:80] if o.tgt <= i + (0 if o.pin else la) and o.kind not in ('salu', 'sync', 'raw')
                        and ready(o) and short(o) <= 0 and not (seen_valu and o.kind in ORD)]
                due = sum(o.cost for o in un[:80] if o.tgt <= i and o.kind not in ('salu', 'sync', 'raw'))
                if not cand: break
                room = 2 - used
                pick = None
                if room > 0:
                    if due == 0 and used == 0: break
                    fit = [o for o in cand if o.cost <= room]
                    head = cand[0]
                    if head.cost > 2 and used == 0 and head.tgt <= i: pick = head
                    elif fit:
                        pick = fit[0]
                        if used == 0 and pick.cost == 1 and pick.kind not in ORD:
                            mem = [o for o in fit if o.kind in ORD and o.cost == 1]
                            if mem: pick = mem[0]
                    elif due > 3: pick = head
                elif due > 3:
                    pick = min(cand, key=lambda o: (o.cost > 2, o.tgt))
                    if pick.tgt > i: pick = None
                if pick is None: break
                used += place(pick)
                if pick.kind in VALU_KINDS: seen_valu = True
            return used
        fill(-1, None)
        for i, m in enumerate(mf):
            u = force(m)
            w = wait_for(m)
            if w: emit(w); u += 1
            ms = short(m)
            if ms > 0:
                emit(Op(f"s_nop {ms-1}", 'salu')); stats['nops'] += ms; u += ms
            stats['cycles'] += 4 * u
            emit(m)
            used = fill(i, mf[i + 1] if i + 1 < len(mf) else None)
            stats['cycles'] += max(16, 8 + 4 * used)
        assert not un, [o.text for o in un[:5]]
        s.out = out; s.stats = stats
        s.verify()
        return out

    def verify(s):
        lastw = {}; exp = {}
        for op in s.ops:
            exp[op] = {r: lastw.get(r) for r in op.rd}
            for r in op.wr: lastw[r] = op
        lastw = {}
        for op in s.out:
            if op in exp:
                for r in op.rd:
                    assert lastw.get(r) is exp[op][r], f"bad def for {r} in {op.text}"
            for r in op.wr: lastw[r] = op
        cum = 0; at = []
        for k, op in enumerate(s.out):
            at.append(cum)
            for j in range(max(0, k - 14), k):
                w = need_ws(s.out[j], op)
                assert cum - at[j] - 1 >= w, f"hazard {s.out[j].text} -> {op.text}"
            m = re.match(r's_nop (\d+)', op.text)
            cum += (int(m.group(1)) + 1) if m else op.text.count('\n') + 1

    def text(s):
        return "\n".join("    " + l for op in s.out for l in op.text.split('\n'))
```

```python
import sys, struct, math
from sched import Op, Prog, rng

KNAME = "standalone__gqa_softmax__near_ridge_kernel"
opt = dict(start='n1', stamps=0, qf='nt', kf='nt', vf='nt', of='', rot=1, pf=1, verbose=0, la1=8, la4=3, thr=30,
           nostore=0)
for a in sys.argv[1:]:
    k, v = a.split('='); opt[k] = type(opt[k])(v)
fl = lambda k: opt[k].replace('+', ' ')

SLOT = 16896; BLK = 1056; FLAG = 8 * SLOT
LDS_BYTES = FLAG + 64
def f2u(x): return struct.unpack('<I', struct.pack('<f', x))[0]
C = math.log2(math.e) / 16.0

S_WAVE = 3; SRD_Q = 8; SRD_K = 12; SRD_V = 16; SRD_O = 20
S_QUART = 28; S_PAIR = 29; S_LW = 30; S_C = 31
S_KT = 32
S_VT = 48
S_SL = 52
S_X = 56
S_MODE = 59; S_NC = 60; S_TV = 61; S_TO = 62; S_T = 63
S_ST = 64
V_KD, V_VD, V_Q, V_O, V_KR, V_VR = 1, 2, 3, 4, 5, 7
V_T = 9
V_M = 12; V_L = 16; V_S = 32; V_P = 96
A_Q = 0; A_P = 128; A_F = 224; A_ONE = 252
def Q(x, s): return rng('a', A_Q + 32 * x + 4 * s, 4)
def Pbase(x, t):
    if t >= 8: return ('v', 128 + 16 * (t - 8) + 4 * x)
    if x == 3: return ('v', V_P + 4 * t)
    return ('a', A_P + 32 * x + 4 * t)
def srd(d): return f"s[{d}:{d+3}]"
def soffx(x): return "0" if x == 0 else f"s{S_X + x - 1}"

P = Prog()
add = P.add
nst = [0]
def stamp(tgt, deps=()):
    if opt['stamps']:
        k = nst[0]; nst[0] += 1
        assert k < 16
        add(Op(f"s_memrealtime s[{S_ST+2*k}:{S_ST+2*k+1}]\ns_waitcnt lgkmcnt(0)", 'raw', tgt=tgt, deps=deps))

def mfma(d, a, b, c):
    cz = c is None
    return add(Op(f"v_mfma_f32_16x16x32_bf16 {d}, {a}, {b}, {'0' if cz else c}", 'mfma',
                  rd=[a, b] + ([] if cz else [c]), wr=[d], c=None if cz else c))

def spread(n, t0, t1): return [t0 + (t1 - t0) * k / n for k in range(n)]
def loadQ(x, t0, t1):
    ops = []
    for s, tg in zip(range(8), spread(8, t0, t1)):
        so = soffx(x)
        ops.append(add(Op(f"buffer_load_dwordx4 {Q(x, s)}, v{V_Q}, {srd(SRD_Q)}, {so} offen offset:{64*s} {fl('qf')}",
                          'load', rd=[f"v{V_Q}"], wr=[Q(x, s)], tgt=tg, pin=True)))
    return ops
def dmaK(t, t0, t1, deps=()):
    ops = []; slot = t & 7
    for e, tg in zip(range(4), spread(4, t0, t1)):
        add(Op(f"s_add_u32 m0, s{S_LW}, {slot*SLOT + e*BLK - e*512}", 'salu', wr=['m0'], tgt=tg - 1.5))
        ops.append(add(Op(f"buffer_load_dwordx4 v{V_KD}, {srd(SRD_K)}, s{S_KT+t} offen offset:{512*e} {fl('kf')} lds",
                          'dma', rd=['m0'], deps=deps, tgt=tg, pin=True)))
    return ops
def dmaV(sl, u, t0, t1, deps=()):
    ops = []; slot = 4 * (sl & 1) + u
    add(Op(f"s_add_u32 s{S_TV}, s{S_VT+u}, s{S_SL+sl}", 'salu', wr=[f"s{S_TV}"], tgt=t0 - 2.5))
    for b, tg in zip(range(4), spread(4, t0, t1)):
        add(Op(f"s_add_u32 m0, s{S_LW}, {slot*SLOT + b*BLK - b*1024}", 'salu', wr=['m0'], tgt=tg - 1.5))
        ops.append(add(Op(f"buffer_load_dwordx4 v{V_VD}, {srd(SRD_V)}, s{S_TV} offen offset:{1024*b} {fl('vf')} lds",
                          'dma', rd=['m0', f"s{S_TV}"], deps=deps, tgt=tg, pin=True)))
    return ops
def sync(tgt, vm=(), after=(), lg=()):
    o = Op("s_barrier", 'sync', deps=list(after), tgt=tgt)
    o.vmwait = list(vm); o.lgwait = list(lg)
    return add(o)

units = []
if opt['start'] == 'n1':
    for x in range(4):
        for t in range(8): units.append(((x,), t, (0, 1)))
    first4 = 8
else:
    first4 = 0
for t in range(first4, 16):
    for hh in range(2): units.append(((0, 1, 2, 3), t, (hh,)))
NU = len(units)

ones_at = [[] for _ in range(NU + 1)]
pend = []
for u, (X, t, H) in enumerate(units):
    quota = max(1, len(X) * len(H) // 2)
    while quota and pend and pend[0][0] <= u:
        ones_at[u].append(pend.pop(0)[1]); quota -= 1
    if 1 in H:
        for x in X: pend.append((u + 2, (x, t)))
ones_tail = [p[1] for p in pend]
ulen = [8 * len(X) * len(H) + len(ones_at[u]) for u, (X, t, H) in enumerate(units)]
g0 = [sum(ulen[:u]) for u in range(NU + 1)]
GPV = g0[NU]
def uidx(x, t, hh=None):
    for u, (X, tt, H) in enumerate(units):
        if x in X and tt == t and (hh is None or hh in H): return u

ring1 = [('v', 128 + 4 * k) for k in range(12)]
ring4 = [('a', A_F + 4 * k) for k in range(7)]
rpos = {1: 0, 4: 0}
def nextfrag(kind):
    r = ring1 if kind == 1 else ring4
    f = r[rpos[kind] % len(r)]; rpos[kind] += 1
    return f
nquads = sum(len(X) * len(H) for X, t, H in units)
sq = [(16 - nquads) % 16]
seen_x = set(); seen_l = set()
cert = {}
lastuse = {}
def ones(x, t):
    f, b = Pbase(x, t); L = rng('v', V_L + 4 * x, 4)
    mfma(L, rng('a', A_ONE, 4), rng(f, b, 4), L if x in seen_l else None); seen_l.add(x)

def lookahead(u):
    n = len(units[u][0])
    return opt['la1'] if n == 1 else opt['la4'] * n
def first_read(u): return g0[u] - lookahead(u) - 1

plan = {}
def at(u, fn): plan.setdefault(u, []).append(fn)
kd = {}; vd = {}
if opt['start'] == 'n1':
    def pro():
        loadQ(0, -100, -99)
        for t in range(4): kd[t] = dmaK(t, -90 + 10 * t, -82 + 10 * t)
        cert[0] = sync(-40, vm=kd[0])
    at(0, pro)
    for t in range(4, 8):
        at(0, lambda t=t: kd.__setitem__(t, dmaK(t, g0[t - 4] + 1, g0[t - 3] - 1)))
    at(0, lambda: loadQ(1, g0[4] + 1, g0[5]))
    at(0, lambda: loadQ(2, g0[8] - 1, g0[8] - 1))
    at(0, lambda: loadQ(3, g0[8] + 4, g0[16] - 8))
    for grp in ([1], [2, 3], [4, 5], [6, 7]):
        def f(grp=grp):
            s = sync(first_read(grp[0]) - 0.5, vm=kd[grp[-1]])
            for t in grp: cert[t] = s
        at(grp[0], f)
    for tq, frees in ((1, [0]), (3, [1, 2]), (5, [3, 4]), (7, [5, 6])):
        u = 24 + tq
        def f(u=u, frees=frees, tq=tq):
            tg = g0[u] + 2
            s = sync(tg, vm=kd[10] if tq == 7 else (), after=[lastuse[t] for t in frees])
            if tq == 7:
                for t in (8, 9, 10): cert[t] = s
            w = (g0[u + 2] - tg - 2) / len(frees) if tq < 7 else 24
            for k, t in enumerate(frees): kd[8 + t] = dmaK(8 + t, tg + 2 + k * w, tg + 2 + (k + 1) * w, deps=[s])
        at(u, f)
    late = {9: ([7, 8], [11, 12, 13, 14]), 11: ([9, 10], [15]), 13: ([11, 12], []), 15: ([13, 14], [])}
else:
    def pro():
        kd[0] = dmaK(0, -190, -182)
        for x in range(4): loadQ(x, -170 + 10 * x, -169 + 10 * x)
        for t in range(1, 3): kd[t] = dmaK(t, -90 + 10 * t, -82 + 10 * t)
        cert[0] = sync(-40, vm=kd[0])
        for t in range(3, 8): kd[t] = dmaK(t, 2 + 32 * (t - 3), 30 + 32 * (t - 3))
    at(0, pro)
    late = {0: ([], [1, 2]), 2: ([0, 1], [3, 4]), 4: ([2, 3], [5, 6, 7]), 7: ([4, 5, 6], [8, 9, 10]),
            9: ([7, 8], [11, 12, 13, 14]), 11: ([9, 10], [15]), 13: ([11, 12], []), 15: ([13, 14], [])}
vcert = {}
for T, (frees, certs) in late.items():
    u = uidx(3, T, 1)
    def f(u=u, T=T, frees=frees, certs=certs):
        tg = g0[u + 1] - 4 * opt['la4'] - 2
        vm = kd[certs[-1]] if certs else ()
        if T == 15: vm = vd[(0, 3)]
        s = sync(tg, vm=vm, after=[lastuse[t] for t in frees])
        for t in certs: cert[t] = s
        if T == 15: vcert[0] = s
        for k, t in enumerate(frees):
            w = 128 / len(frees)
            t0 = tg + 3 + k * w
            if t < 8: kd[t + 8] = dmaK(t + 8, t0, t0 + w, deps=[s])
            else: vd[((t - 8) // 4, (t - 8) % 4)] = dmaV((t - 8) // 4, (t - 8) % 4, t0, t0 + w, deps=[s])
    at(u, f)

for u, (X, t, H) in enumerate(units):
    for fn in plan.get(u, ()): fn()
    if opt['stamps'] and (u == 0 or (len(X) == 1 and t == 0) or (len(X) == 4 and t in (8, 12) and H == (0,))):
        stamp(g0[u] - (0.5 if u else 1))
    n = len(X); slot = t & 7
    Sq = {}
    for hh in H:
        for x in X:
            Sq[(x, hh)] = V_S + 4 * (sq[0] % 16); sq[0] += 1
    nmain = 8 * n * len(H)
    opos = {int((k + 0.5) * 8 / len(ones_at[u])): o for k, o in enumerate(ones_at[u])}
    for s in range(8):
        for hh in H:
            f, b = nextfrag(1 if n == 1 else 4); fr = rng(f, b, 4)
            off = (slot & 3) * SLOT + hh * 8 * BLK + s * 64
            add(Op(f"ds_read_b128 {fr}, v{V_KR + (slot >> 2)} offset:{off}", 'ds', rd=[f"v{V_KR + (slot >> 2)}"], wr=[fr],
                   deps=[cert[t]], tgt=P.nm - lookahead(u) - 1))
            for x in X:
                d = rng('v', Sq[(x, hh)], 4)
                lastuse[t] = mfma(d, fr, Q(x, s), None if s == 0 else d)
        if s in opos: ones(*opos[s])
    w0 = g0[u + 1]; w1 = g0[u + 2] if u + 2 <= NU else w0 + 40
    sm = []
    for hh in H:
        for x in X:
            S = Sq[(x, hh)]; M = f"v{V_M + x}"
            if x not in seen_x:
                seen_x.add(x)
                t0, t1 = f"v{V_T}", f"v{V_T+1}"
                sm += [Op(f"v_max3_f32 {t0}, v{S}, v{S+1}, v{S+2}", 'valu', rd=[rng('v', S, 3)], wr=[t0]),
                       Op(f"v_max_f32 {t0}, {t0}, v{S+3}", 'valu', rd=[t0, f"v{S+3}"], wr=[t0]),
                       Op(f"v_mov_b32 {t1}, {t0}", 'valu', rd=[t0], wr=[t1]),
                       Op(f"v_permlane16_swap_b32 {t0}, {t1}", 'perm', rd=[t0, t1], wr=[t0, t1]),
                       Op(f"v_max_f32 {t0}, {t0}, {t1}", 'valu', rd=[t0, t1], wr=[t0]),
                       Op(f"v_mov_b32 {t1}, {t0}", 'valu', rd=[t0], wr=[t1]),
                       Op(f"v_permlane32_swap_b32 {t0}, {t1}", 'perm', rd=[t0, t1], wr=[t0, t1]),
                       Op(f"v_max_f32 {t0}, {t0}, {t1}", 'valu', rd=[t0, t1], wr=[t0]),
                       Op(f"v_mul_f32 {t0}, s{S_NC}, {t0}", 'valu', rd=[t0], wr=[t0]),
                       Op(f"v_min_f32 {M}, {M}, {t0}", 'valu', rd=[M, t0], wr=[M])]
            pf, pb = Pbase(x, t)
            for k in range(2):
                for r in (2 * k, 2 * k + 1):
                    sm.append(Op(f"v_fma_f32 v{S+r}, v{S+r}, s{S_C}, {M}", 'valu', rd=[f"v{S+r}", M], wr=[f"v{S+r}"]))
                    sm.append(Op(f"v_exp_f32 v{S+r}, v{S+r}", 'trans', rd=[f"v{S+r}"], wr=[f"v{S+r}"]))
                dst = f"{pf}{pb + 2*hh + k}"
                if pf == 'v':
                    sm.append(Op(f"v_cvt_pk_bf16_f32 {dst}, v{S+2*k}, v{S+2*k+1}", 'valu', rd=[rng('v', S + 2*k, 2)], wr=[dst], name='late'))
                else:
                    sm.append(Op(f"v_cvt_pk_bf16_f32 v{S+2*k}, v{S+2*k}, v{S+2*k+1}", 'valu', rd=[rng('v', S + 2*k, 2)], wr=[f"v{S+2*k}"], name='late'))
                    sm.append(Op(f"v_accvgpr_write_b32 {dst}, v{S+2*k}", 'valu', rd=[f"v{S+2*k}"], wr=[dst], name='late2'))
    tot = sum(o.cost for o in sm); acc = 0
    for o in sm:
        o.tgt = w0 + (w1 - w0) * acc / tot + (1.5 if o.name == 'late' else 2.5 if o.name == 'late2' else 0)
        acc += o.cost; add(o)

stamp(GPV - 0.5)
ACC = lambda st, uu, x: V_S + 32 * st + 16 * uu + 4 * x
vlast = {}
LAV = 4 * opt['la4']
def drain(sw, w0, w1):
    st = sw & 1; sl = sw >> 1
    ops = []
    for x in range(4):
        a0, a1 = ACC(st, 0, x), ACC(st, 1, x); R = f"v{V_L + 4*x}"
        for a in (a0, a1):
            for r in range(4):
                ops.append(Op(f"v_mul_f32 v{a+r}, v{a+r}, {R}", 'valu', rd=[f"v{a+r}", R], wr=[f"v{a+r}"]))
        for k, src in enumerate((a0, a0 + 2, a1, a1 + 2)):
            ops.append(Op(f"v_cvt_pk_bf16_f32 v{a0+k}, v{src}, v{src+1}", 'valu', rd=[rng('v', src, 2)], wr=[f"v{a0+k}"]))
        for k in range(2):
            ops.append(Op(f"v_permlane16_swap_b32 v{a0+k}, v{a0+2+k}", 'perm', rd=[f"v{a0+k}", f"v{a0+2+k}"], wr=[f"v{a0+k}", f"v{a0+2+k}"]))
        if x == 0: so = f"s{S_SL+sl}"
        else:
            so = f"s{S_TO}"
            ops.append(Op(f"s_add_u32 {so}, s{S_SL+sl}, {8192*x}", 'salu', wr=[so], name='early'))
        if not opt['nostore']:
            ops.append(Op(f"buffer_store_dwordx4 {rng('v', a0, 4)}, v{V_O}, {srd(SRD_O)}, {so} offen offset:{64*(sw & 1)} {fl('of')}",
                          'store', rd=[rng('v', a0, 4), f"v{V_O}", so], pin=True))
    tot = sum(o.cost for o in ops); acc = 0
    for o in ops:
        o.tgt = w0 + (w1 - w0) * acc / tot - (3 if o.name == 'early' else 0); acc += o.cost
    return ops

swstart = []
g = GPV
for sw in range(8):
    swstart.append(g); g += 128 + (len(ones_tail) if sw == 0 else 0)
swstart.append(g)
flagw = None
for sw in range(8):
    sl = sw >> 1; st = sw & 1
    G0 = swstart[sw]; G1 = swstart[sw + 1]
    assert P.nm == G0
    if opt['stamps'] and sw in (2, 4, 6, 7): stamp(G0 - 0.5)
    dr = drain(sw - 1, G0 + 4, G1 - 24) if sw else []
    for o in dr: add(o)
    for kt in range(16):
        slot = 4 * (sl & 1) + kt // 4
        for uu in range(2):
            f, b = nextfrag(4)
            off = (slot & 3) * SLOT + (kt & 3) * 4 * BLK + (2 * st + uu) * 32
            for h2 in range(2):
                fr = rng(f, b + 2 * h2, 2)
                add(Op(f"ds_read_b64_tr_b16 {fr}, v{V_VR + (slot >> 2)} offset:{off + 512*h2}", 'ds',
                       rd=[f"v{V_VR + (slot >> 2)}"], wr=[fr], deps=[vcert[sl]], tgt=P.nm - LAV - 1 + 2 * h2))
            for x in range(4):
                d = rng('v', ACC(st, uu, x), 4); pf, pb = Pbase(x, kt)
                vlast[(sl, kt // 4)] = mfma(d, rng(f, b, 4), rng(pf, pb, 4), None if kt == 0 else d)
        if sw == 0 and kt >= 6 and ones_tail:
            ones(*ones_tail.pop(0))
            if kt >= 8 and ones_tail: ones(*ones_tail.pop(0))
        if sw == 0 and kt == 12:
            assert not ones_tail
            tg = P.nm + 2; t0 = f"v{V_T}"; t1 = f"v{V_T+1}"
            L = [f"v{V_L + 4*x}" for x in range(4)]
            add(Op(f"v_add_f32 {t0}, {L[0]}, {L[1]}", 'valu', rd=L[:2], wr=[t0], tgt=tg))
            add(Op(f"v_add_f32 {t1}, {L[2]}, {L[3]}", 'valu', rd=L[2:], wr=[t1], tgt=tg + 1))
            add(Op(f"v_add_f32 {t0}, {t0}, {t1}", 'valu', rd=[t0, t1], wr=[t0], tgt=tg + 2))
            add(Op(f"v_cmp_nge_f32 vcc, {f2u(2.0**opt['thr']):#x}, {t0}", 'valu', rd=[t0], wr=['vcc'], tgt=tg + 3))
            add(Op(f"s_cmp_lg_u64 vcc, 0\ns_cselect_b32 s{S_T}, 1, 0", 'salu', rd=['vcc'], wr=[f"s{S_T}"], tgt=tg + 5))
            add(Op(f"v_mov_b32 {t0}, s{S_T}", 'valu', rd=[f"s{S_T}"], wr=[t0], tgt=tg + 6))
            add(Op(f"v_mov_b32 {t1}, s{S_WAVE}", 'valu', wr=[t1], tgt=tg + 6))
            add(Op(f"v_lshlrev_b32 {t1}, 2, {t1}", 'valu', rd=[t1], wr=[t1], tgt=tg + 7))
            add(Op(f"v_add_u32 {t1}, {FLAG}, {t1}", 'valu', rd=[t1], wr=[t1], tgt=tg + 8))
            for x in range(4):
                add(Op(f"v_rcp_f32 {L[x]}, {L[x]}", 'trans', rd=[L[x]], wr=[L[x]], tgt=tg + 9 + 2 * x))
        if sw == 0 and kt == 15:
            flagw = add(Op(f"ds_write_b32 v{V_T+1}, v{V_T}", 'dsw', rd=[f"v{V_T}", f"v{V_T+1}"], tgt=P.nm - LAV - 1))
        if sw == 1 and kt == 3:
            t0 = f"v{V_T}"; t1 = f"v{V_T+1}"; tg = P.nm - LAV
            add(Op(f"v_and_b32 {t1}, 3, v0", 'valu', wr=[t1], tgt=tg - 4))
            add(Op(f"v_lshlrev_b32 {t1}, 2, {t1}", 'valu', rd=[t1], wr=[t1], tgt=tg - 3))
            add(Op(f"v_add_u32 {t1}, {FLAG}, {t1}", 'valu', rd=[t1], wr=[t1], tgt=tg - 2))
            add(Op(f"ds_read_b32 {t0}, {t1}", 'ds', rd=[t1], wr=[t0], deps=[msync], tgt=tg - 1))
            add(Op(f"v_cmp_lt_u32 vcc, s{S_MODE}, {t0}", 'valu', rd=[t0], wr=['vcc'], tgt=tg + LAV + 4, pin=True))
            add(Op(f"s_cmp_lg_u64 vcc, 0\ns_cbranch_scc1 L_fallback", 'salu', rd=['vcc'], tgt=tg + LAV + 6))
        if st == 1 and kt == 0 and sl < 3:
            prev = lastuse[15] if sl == 0 else vlast[(sl - 1, 3)]
            msync = sync(G0 + 2, after=[prev], lg=[flagw] if sl == 0 else ())
            vd[(sl + 1, 3)] = dmaV(sl + 1, 3, G0 + 5, G0 + 21, deps=[msync])
        if st == 1 and kt == 13 and sl < 3:
            tg = G1 - LAV - 2
            s = sync(tg, vm=vd[(sl + 1, 3)], after=[vlast[(sl, 2)]])
            vcert[sl + 1] = s
            if sl < 2:
                for u in range(3): vd[(sl + 2, u)] = dmaV(sl + 2, u, tg + 3 + 40 * u, tg + 43 + 40 * u, deps=[s])
for o in drain(7, swstart[8], swstart[8] + 1): add(o)

vm = [o for o in P.ops if o.kind in ('dma', 'load', 'store')]
P.vm_order = sorted(vm, key=lambda o: (o.tgt, o.idx))

lg_extra = lambda i: 1 if (opt['start'] == 'n1' and i < g0[32] - 10) else 0
P.schedule(lg_extra=lg_extra, verbose=opt['verbose'])
print("; sched stats", P.stats, "n_instr", sum(o.text.count('\n') + 1 for o in P.out), "mfma", P.nm, file=sys.stderr)

T = []
A = T.append
def mksrd(d, ptr, offreg, nbytes):
    A(f"s_add_u32 s{d}, s{ptr}, s{offreg}")
    A(f"s_addc_u32 s{d+1}, s{ptr+1}, 0")
    A(f"s_and_b32 s{d+1}, s{d+1}, 0xffff")
    A(f"s_mov_b32 s{d+2}, {nbytes:#x}")
    A(f"s_mov_b32 s{d+3}, 0x20000")
if opt['stamps']:
    A(f"s_memrealtime s[{S_ST+30}:{S_ST+31}]")
A("s_cmp_ge_u32 s2, 256")
A("s_cbranch_scc1 L_end")
A("s_load_dwordx4 s[4:7], s[0:1], 0")
A("s_load_dwordx4 s[24:27], s[0:1], 16")
if opt['pf']:
    A("s_getpc_b64 s[96:97]")
    A(f"v_lshlrev_b32 v{V_T+2}, 7, v0")
A(f"v_lshrrev_b32 v{V_T}, 6, v0")
A("v_and_b32 v0, 63, v0")
A(f"v_readfirstlane_b32 s{S_WAVE}, v{V_T}")
if opt['pf']:
    A(f"global_load_dword v{V_S}, v{V_T+2}, s[96:97]")
    A(f"v_add_u32 v{V_T+2}, 0x8000, v{V_T+2}")
    A(f"v_min_u32 v{V_T+2}, L_codeend - {KNAME} - 256, v{V_T+2}")
    A(f"global_load_dword v{V_S+1}, v{V_T+2}, s[96:97]")
A(f"v_and_b32 v{V_T}, 15, v0")
A(f"v_lshrrev_b32 v{V_T+1}, 4, v0")
A(f"v_lshlrev_b32 v{V_Q}, 9, v{V_T}")
A(f"v_lshl_add_u32 v{V_Q}, v{V_T+1}, 4, v{V_Q}")
A(f"v_lshrrev_b32 v{V_KD}, 5, v0")
A(f"v_lshlrev_b32 v{V_KD}, 12, v{V_KD}")
A(f"v_and_b32 v{V_T+2}, 31, v0")
A(f"v_lshl_add_u32 v{V_KD}, v{V_T+2}, 4, v{V_KD}")
A(f"s_and_b32 s{S_PAIR}, s2, 7")
A(f"s_lshl_b32 s{S_PAIR}, s{S_PAIR}, 3")
A(f"s_lshr_b32 s{S_T}, s2, 5")
A(f"s_add_u32 s{S_PAIR}, s{S_PAIR}, s{S_T}")
A(f"s_lshr_b32 s{S_QUART}, s2, 3")
A(f"s_and_b32 s{S_QUART}, s{S_QUART}, 3")
A(f"s_lshl_b32 s{S_TO}, s{S_PAIR}, 2")
A(f"s_add_u32 s{S_TO}, s{S_TO}, s{S_QUART}")
A(f"s_lshl_b32 s{S_TO}, s{S_TO}, 2")
A(f"s_add_u32 s{S_TO}, s{S_TO}, s{S_WAVE}")
A(f"s_lshl_b32 s{S_TO}, s{S_TO}, 15")
A(f"s_lshl_b32 s{S_TV}, s{S_PAIR}, 18")
A(f"s_mul_i32 s{S_LW}, s{S_WAVE}, {4*BLK}")
A(f"s_lshr_b32 s{S_T}, s{S_WAVE}, 1")
A(f"s_lshl_b32 s{S_T}, s{S_T}, 13")
A(f"s_and_b32 s{S_C}, s{S_WAVE}, 1")
A(f"s_lshl_b32 s{S_C}, s{S_C}, 11")
A(f"s_or_b32 s{S_T}, s{S_T}, s{S_C}")
ROT = S_NC
if opt['rot']: A(f"s_lshl_b32 s{ROT}, s{S_QUART}, 1")
else: A(f"s_mov_b32 s{ROT}, 0")
for t in range(8):
    A(f"s_add_u32 s{S_KT+t}, s{ROT}, {t}")
    A(f"s_and_b32 s{S_KT+t}, s{S_KT+t}, 7")
    A(f"s_lshl_b32 s{S_KT+t}, s{S_KT+t}, 14")
    A(f"s_or_b32 s{S_KT+t}, s{S_KT+t}, s{S_T}")
    A(f"s_add_u32 s{S_KT+8+t}, s{S_KT+t}, 0x20000")
for u in range(4):
    A(f"s_add_u32 s{S_VT+u}, s{ROT}, s{S_WAVE}")
    A(f"s_add_u32 s{S_VT+u}, s{S_VT+u}, {4*u}")
    A(f"s_and_b32 s{S_VT+u}, s{S_VT+u}, 7")
    if u >= 2: A(f"s_or_b32 s{S_VT+u}, s{S_VT+u}, 8")
    A(f"s_lshl_b32 s{S_VT+u}, s{S_VT+u}, 14")
    if opt['rot']:
        A(f"s_add_u32 s{S_SL+u}, s{S_QUART}, {u}")
        A(f"s_and_b32 s{S_SL+u}, s{S_SL+u}, 3")
        A(f"s_lshl_b32 s{S_SL+u}, s{S_SL+u}, 7")
    else:
        A(f"s_mov_b32 s{S_SL+u}, {128*u}")
for x in range(1, 4): A(f"s_mov_b32 s{S_X+x-1}, {8192*x}")
A(f"s_mov_b32 s{S_C}, {f2u(C):#x}")
A(f"s_mov_b32 s{S_NC}, {f2u(-C):#x}")
A(f"s_mov_b32 s{S_MODE}, 0")
A(f"v_and_b32 v{V_T+2}, 7, v0")
A(f"v_mul_u32_u24 v{V_KR}, {BLK}, v{V_T+2}")
A(f"v_lshrrev_b32 v{V_T+2}, 3, v{V_T}")
A(f"v_lshl_add_u32 v{V_KR}, v{V_T+2}, 9, v{V_KR}")
A(f"v_lshl_add_u32 v{V_KR}, v{V_T+1}, 4, v{V_KR}")
A(f"v_add_u32 v{V_KR+1}, {4*SLOT}, v{V_KR}")
A(f"v_bfe_u32 v{V_T+2}, v0, 3, 1")
A(f"v_lshl_add_u32 v{V_T+2}, v{V_T+1}, 3, v{V_T+2}")
A(f"v_lshlrev_b32 v{V_VD}, 9, v{V_T+2}")
A(f"v_and_b32 v{V_T+2}, 7, v0")
A(f"v_lshl_add_u32 v{V_VD}, v{V_T+2}, 4, v{V_VD}")
A(f"v_bfe_u32 v{V_T+2}, v0, 3, 2")
A(f"v_mul_u32_u24 v{V_VR}, {BLK}, v{V_T+2}")
A(f"v_lshrrev_b32 v{V_T+2}, 5, v0")
A(f"v_lshl_add_u32 v{V_VR}, v{V_T+2}, 8, v{V_VR}")
A(f"v_bfe_u32 v{V_T+2}, v0, 2, 1")
A(f"v_lshl_add_u32 v{V_VR}, v{V_T+2}, 7, v{V_VR}")
A(f"v_and_b32 v{V_T+2}, 3, v0")
A(f"v_lshl_add_u32 v{V_VR}, v{V_T+2}, 3, v{V_VR}")
A(f"v_add_u32 v{V_VR+1}, {4*SLOT}, v{V_VR}")
A(f"v_lshlrev_b32 v{V_O}, 9, v{V_T}")
A(f"v_bfe_u32 v{V_T+2}, v0, 4, 1")
A(f"v_lshl_add_u32 v{V_O}, v{V_T+2}, 5, v{V_O}")
A(f"v_lshrrev_b32 v{V_T+2}, 5, v0")
A(f"v_lshl_add_u32 v{V_O}, v{V_T+2}, 4, v{V_O}")
A(f"v_mov_b32 v{V_T+2}, 0x3f803f80")
for k in range(4):
    A(f"v_mov_b32 v{V_M+k}, 0x7f800000")
    A(f"v_accvgpr_write_b32 a{A_ONE+k}, v{V_T+2}")
A("s_waitcnt lgkmcnt(0)")
mksrd(SRD_Q, 4, S_TO, 0x8000)
mksrd(SRD_K, 6, S_TV, 0x40000)
mksrd(SRD_V, 24, S_TV, 0x40000)
mksrd(SRD_O, 26, S_TO, 0x8000)
pro = "\n".join("    " + l for l in T)

T = []; A = T.append
if opt['stamps']:
    k = nst[0]
    A(f"s_memrealtime s[{S_ST+2*k}:{S_ST+2*k+1}]")
    A("s_waitcnt vmcnt(0)")
    A(f"s_memrealtime s[{S_ST+2*k+2}:{S_ST+2*k+3}]")
    A("s_load_dwordx2 s[4:5], s[0:1], 40")
    A("s_waitcnt lgkmcnt(0)")
    A("s_mov_b32 s8, s4\n    s_and_b32 s9, s5, 0xffff\n    s_mov_b32 s10, 0x10000000\n    s_mov_b32 s11, 0x20000")
    A(f"s_lshl_b32 s6, s2, 2\n    s_add_u32 s6, s6, s{S_WAVE}\n    s_lshl_b32 s6, s6, 6")
    for i in range(16): A(f"v_mov_b32 v{32+i}, s{S_ST+2*i}")
    A("v_mov_b32 v1, s6")
    A("s_mov_b64 exec, 1")
    for i in range(4): A(f"buffer_store_dwordx4 v[{32+4*i}:{35+4*i}], v1, s[8:11], 0 offen offset:{16*i}")
epi = "\n".join("    " + l for l in T)

T = []; A = T.append
A("s_waitcnt vmcnt(0) lgkmcnt(0)")
A("s_nop 7")
for x in range(4): A(f"v_mov_b32 v{V_L+x}, 0xff800000")
A(f"s_and_b32 s{S_TV}, s{S_KT}, 0x3fff")
A("L_fb_loop:")
A("s_barrier")
for e in range(4):
    A(f"s_add_u32 m0, s{S_LW}, {e*BLK - e*512}")
    A("s_nop 0")
    A(f"buffer_load_dwordx4 v{V_KD}, {srd(SRD_K)}, s{S_TV} offen offset:{512*e} lds")
A("s_waitcnt vmcnt(0)")
A("s_barrier")
for hh in range(2):
    for s in range(8):
        A(f"ds_read_b128 v[{V_P+4*s}:{V_P+4*s+3}], v{V_KR} offset:{hh*8*BLK + s*64}")
    A("s_waitcnt lgkmcnt(0)")
    for s in range(8):
        for x in range(4):
            d = rng('v', V_S + 4 * x, 4)
            A(f"v_mfma_f32_16x16x32_bf16 {d}, v[{V_P+4*s}:{V_P+4*s+3}], {Q(x, s)}, {'0' if s == 0 else d}")
    A("s_nop 7")
    for x in range(4):
        S = V_S + 4 * x
        A(f"v_max3_f32 v{V_L+x}, v{V_L+x}, v{S}, v{S+1}")
        A(f"v_max3_f32 v{V_L+x}, v{V_L+x}, v{S+2}, v{S+3}")
A(f"s_add_u32 s{S_TV}, s{S_TV}, 0x4000")
A(f"s_cmp_lt_u32 s{S_TV}, 0x40000")
A("s_cbranch_scc1 L_fb_loop")
for x in range(4):
    t0 = f"v{V_L+x}"; t1 = f"v{V_T}"
    for sw in ("16", "32"):
        A(f"v_mov_b32 {t1}, {t0}")
        A("s_nop 1")
        A(f"v_permlane{sw}_swap_b32 {t0}, {t1}")
        A("s_nop 1")
        A(f"v_max_f32 {t0}, {t0}, {t1}")
    A(f"v_mul_f32 v{V_M+x}, s{S_NC}, {t0}")
A(f"s_mov_b32 s{S_MODE}, 1")
A("s_barrier")
A("s_branch L_restart")
fb = "\n".join(("" if l.endswith(":") else "    ") + l for l in T)

print(f"""; GQA attention forward, B=8 Hq=16 Hkv=8 Sq=Sk=512 D=256, bf16.  Generated by gen/gen.py.
; Phase 2: O^T = V^T P^T in 32-column sweeps, normalised and stored while the next sweep runs.
; @launch grid=(256,1,1) block=(256,1,1) lds={LDS_BYTES}
.amdgcn_target "amdgcn-amd-amdhsa--gfx950"
.text
.globl {KNAME}
.p2align 8
.type {KNAME},@function
{KNAME}:
{pro}
L_restart:
{P.text()}
{epi}
L_end:
    s_endpgm
L_fallback:
{fb}
L_codeend:
.section .rodata,"a"
.p2align 6
.amdhsa_kernel {KNAME}
  .amdhsa_next_free_vgpr 512
  .amdhsa_next_free_sgpr 102
  .amdhsa_accum_offset 256
  .amdhsa_group_segment_fixed_size 0
  .amdhsa_kernarg_size 48
  .amdhsa_user_sgpr_count 2
  .amdhsa_user_sgpr_kernarg_segment_ptr 1
  .amdhsa_system_sgpr_workgroup_id_x 1
.end_amdhsa_kernel""")
```
